```python
import torch

def _softmax(x, axis=-1):
    return torch.softmax(x, dim=axis)
def _gelu(x):
    return torch.nn.functional.gelu(x, approximate="tanh")
def _silu(x):
    return torch.nn.functional.silu(x)
def _sigmoid(x):
    return torch.sigmoid(x)
def _layernorm(x, axis=-1, eps=1e-5):
    m = x.mean(dim=axis, keepdim=True)
    v = x.var(dim=axis, keepdim=True, unbiased=False)
    return (x - m) / torch.sqrt(v + eps)
def _scatter_add(tgt, idx, src, axis=0):
    return tgt.clone().index_add_(axis, idx, src)
def _segment_sum(src, seg, n):
    out = torch.zeros((n,) + src.shape[1:], dtype=src.dtype)
    return out.index_add_(0, seg, src)
def _pad(x, pw):
    flat = tuple(v for pair in reversed(pw) for v in pair)
    return torch.nn.functional.pad(x, flat)

kernel_name = 'standalone__mha_softmax__near_ridge'

def setup_inputs():

    _w = (lambda a: (lambda t: t.to(torch.bfloat16) if t.is_floating_point() else t)(torch.as_tensor(a)))
    B, H, Sq, Sk, D = 16, 16, 848, 512, 256
    return {
        "q": _w((lambda *s: torch.randn(*s, dtype=torch.bfloat16) * 0.8)(B, H, Sq, D)),
        "k": _w((lambda *s: torch.randn(*s, dtype=torch.bfloat16) * 0.8)(B, H, Sk, D)),
        "v": _w((lambda *s: torch.randn(*s, dtype=torch.bfloat16) * 0.05)(B, H, Sk, D)),
    }

def reference(q, k, v):
    scale = q.shape[-1] ** -0.5
    scores = torch.einsum("bhqd,bhkd->bhqk", q, k) * scale
    p = _softmax(scores, axis=-1)
    return torch.einsum("bhqk,bhkd->bhqd", p, v)
```

```python
import re


def R(prefix, lo, n=1):
    return {"%s%d" % (prefix, i) for i in range(lo, lo + n)}


def rng(prefix, lo, n):
    return "%s%d" % (prefix, lo) if n == 1 else "%s[%d:%d]" % (prefix, lo, lo + n - 1)


class I:
    __slots__ = ("t", "k", "r", "w", "tag", "srcc", "vm", "lg")

    def __init__(self, t, k, r=(), w=(), tag=None, srcc=()):
        self.t = t
        self.k = k
        self.r = set(r)
        self.w = set(w)
        self.tag = tag
        self.srcc = set(srcc)
        self.vm = None
        self.lg = None

    def __repr__(self):
        return self.t


def reg_of(x):
    return rng(*x)


def regs_of(x):
    return R(*x)


def mfma(d, a, b, c=None):
    ct = "0" if c is None else reg_of(c)
    rr = regs_of(a) | regs_of(b) | (regs_of(c) if c else set())
    return I("v_mfma_f32_16x16x32_bf16 %s, %s, %s, %s" % (reg_of(d), reg_of(a), reg_of(b), ct), "mfma",
             rr, regs_of(d), srcc=(regs_of(c) if c else ()))


_tok = re.compile(r"(?<![\w.])(-?)([vas])(\d+)(?![\w\[])|(?<![\w.])([vas])\[(\d+):(\d+)\]|\b(vcc|m0|exec|scc)\b")


def parse_regs(s):
    out = set()
    for m in _tok.finditer(s):
        if m.group(2):
            out.add(m.group(2) + m.group(3))
        elif m.group(4):
            for i in range(int(m.group(5)), int(m.group(6)) + 1):
                out.add(m.group(4) + str(i))
        else:
            out.add(m.group(7))
    return out


def op(text, kind=None, tag=None, rmw=False, extra_r=(), extra_w=()):
    mn, _, rest = text.partition(" ")
    ops = [o.strip() for o in rest.split(",")]
    if kind is None:
        if mn.startswith(("v_exp", "v_rcp", "v_log", "v_rsq", "v_sqrt")):
            kind = "trans"
        elif mn.startswith("v_permlane"):
            kind = "perm"
        elif mn.startswith("v_"):
            kind = "valu"
        elif mn.startswith("ds_read"):
            kind = "lds"
        elif mn.startswith("buffer_load") and text.rstrip().endswith("lds"):
            kind = "dma"
        elif mn.startswith("buffer_load"):
            kind = "vld"
        elif mn.startswith("buffer_store"):
            kind = "vst"
        elif mn.startswith("s_"):
            kind = "salu"
        else:
            raise ValueError(text)
    if kind == "dma":
        r = parse_regs(rest) | {"m0"}
        w = set()
    elif kind == "vst":
        r = parse_regs(rest)
        w = set()
    elif kind == "perm":
        r = parse_regs(rest)
        w = set(r)
    elif mn.startswith("s_cmp"):
        r = parse_regs(rest)
        w = {"scc"}
    else:
        w = parse_regs(ops[0])
        r = parse_regs(",".join(ops[1:]))
        if rmw:
            r |= w
        if kind == "salu":
            if mn.startswith(("s_add", "s_sub", "s_and", "s_or", "s_xor", "s_lshl", "s_lshr", "s_andn2")):
                w.add("scc")
            if mn.startswith(("s_cselect", "s_addc", "s_subb")):
                r.add("scc")
    r |= set(extra_r)
    w |= set(extra_w)
    return I(text, kind, r, w, tag)


def raw(text, kind="raw"):
    return I(text, kind)


def label(name):
    return I(name + ":", "label")


def wait_vm(tag):
    i = I("s_waitcnt vmcnt(?)", "wait")
    i.vm = tag
    return i


COST = {"valu": 1, "perm": 1, "trans": 2, "lds": 1, "dma": 2, "vld": 2, "vst": 2, "salu": 0, "wait": 0, "bar": 0,
        "raw": 0}
ORDER = {"wait": 0, "salu": 1, "bar": 1, "raw": 1, "lds": 2, "dma": 3, "vld": 3, "vst": 3, "valu": 4, "perm": 4,
         "trans": 4}


class Item:
    __slots__ = ("ins", "lo", "tgt", "hi", "deps", "gap", "seq", "fixed", "mind")

    def __init__(self, ins, lo=0, tgt=None, hi=None, fixed=None):
        self.ins = ins
        self.lo = lo
        self.tgt = lo if tgt is None else tgt
        self.hi = hi
        self.deps = []
        self.gap = None
        self.fixed = fixed


def spread(items, lo, hi):
    tot = sum(max(COST[i.ins.k], 0.25) for i in items)
    acc = 0.0
    for it in items:
        it.tgt = lo + (hi - lo) * acc / tot
        acc += max(COST[it.ins.k], 0.25)


def schedule(mfmas, items, reserved_shadow=(), look=1.5, vmem_pre=1, cap=2):
    G = len(mfmas)
    last_w, last_r = {}, {}
    prev_vm = None
    for seq, it in enumerate(items):
        it.seq = seq
        ins = it.ins
        deps = {}
        for r in ins.r:
            if r in last_w:
                p = last_w[r]
                d = 0
                pk, ck = p.ins.k, ins.k
                if pk == "trans" and ck != "trans":
                    d = 1
                if ck == "perm" and pk in ("valu", "trans", "perm"):
                    d = 1
                if ck in ("vst", "lds", "vld", "dma") and pk in ("valu", "trans", "perm", "salu"):
                    d = 1
                if ck == "salu" and pk in ("valu",):
                    d = 1
                deps[p] = max(deps.get(p, 0), d)
        for r in ins.w:
            if r in last_w:
                p = last_w[r]
                deps[p] = max(deps.get(p, 0), 0 if ORDER[p.ins.k] <= ORDER[ins.k] else 1)
            for p in last_r.get(r, ()):
                if p is not it:
                    d = 0 if ORDER[p.ins.k] <= ORDER[ins.k] else 1
                    if p.ins.k == "vst":
                        d = 1
                    deps[p] = max(deps.get(p, 0), d)
        if ins.k in ("dma", "vld", "vst"):
            if prev_vm is not None:
                deps[prev_vm] = max(deps.get(prev_vm, 0), 0)
            prev_vm = it
        for p, d in it.deps:
            deps[p] = max(deps.get(p, 0), d)
        it.deps = list(deps.items())
        for r in ins.r:
            last_r.setdefault(r, []).append(it)
        for r in ins.w:
            last_w[r] = it
            last_r[r] = []
    for it in reversed(items):
        if it.fixed is not None:
            it.hi = it.fixed
            it.lo = it.fixed
            it.tgt = it.fixed
        if it.hi is not None:
            for p, d in it.deps:
                h = it.hi - d
                if p.hi is None or p.hi > h:
                    p.hi = h
    gaps = [[] for _ in range(G + 1)]
    used = [0] * (G + 1)
    shadow = [g in reserved_shadow for g in range(G + 1)]
    capv = [cap] * (G + 1)
    for it in items:
        if it.fixed is not None and it.ins.k in ("dma", "vld", "vst"):
            for k in range(1, vmem_pre + 1):
                if it.fixed - k >= 0:
                    capv[it.fixed - k] = min(capv[it.fixed - k], 1)
    pending = list(items)
    for g in range(G):
        progress = True
        while progress:
            progress = False
            cands = []
            for it in pending:
                if it.lo > g:
                    continue
                ok = True
                for p, d in it.deps:
                    if p.gap is None or p.gap + d > g:
                        ok = False
                        break
                if not ok:
                    continue
                forced = it.hi is not None and it.hi <= g
                if not forced and it.tgt > g + look:
                    continue
                cands.append((0 if forced else 1, it.tgt, it.seq, it, forced))
            cands.sort(key=lambda x: x[:3])
            for _, _, _, it, forced in cands:
                c = COST[it.ins.k]
                if c == 0:
                    if shadow[g] and not forced:
                        continue
                    if shadow[g]:
                        used[g] += 1
                    shadow[g] = True
                else:
                    if used[g] + c > capv[g] and not forced:
                        continue
                    used[g] += c
                it.gap = g
                gaps[g].append(it)
                pending.remove(it)
                progress = True
                break
    out = []
    over = 0
    for g in range(G):
        out.append(mfmas[g])
        lst = sorted(gaps[g], key=lambda it: (ORDER[it.ins.k], it.seq))
        out += [it.ins for it in lst]
        over += max(0, used[g] - cap)
    tail = [it.ins for it in pending]
    return out, tail, over, used[:G]


class WaitState:
    def __init__(self):
        self.lds = []
        self.vm = []

    def copy(self):
        s = WaitState()
        s.lds = list(self.lds)
        s.vm = list(self.vm)
        return s


def insert_waits(code, st, verify=False):
    out = []
    for ins in code:
        if ins.k == "wait":
            if ins.vm is not None and not verify:
                idx = [i for i, (tag, _) in enumerate(st.vm) if tag == ins.vm]
                if idx:
                    n = len(st.vm) - 1 - idx[-1]
                else:
                    n = None
                full = ins.lg == 0
                parts = []
                if n is not None:
                    parts.append("vmcnt(%d)" % min(n, 63))
                if full:
                    parts.append("lgkmcnt(0)")
                ins = I("s_waitcnt " + " ".join(parts), "wait", tag=ins.tag) if parts else I("s_nop 0", "nop")
            m = re.search(r"vmcnt\((\d+)\)", ins.t)
            if m and ins.tag != "cond":
                n = int(m.group(1))
                st.vm = st.vm[len(st.vm) - n:] if n < len(st.vm) else st.vm
                if n == 0:
                    st.vm = []
            m = re.search(r"lgkmcnt\((\d+)\)", ins.t)
            if m:
                n = int(m.group(1))
                st.lds = st.lds[len(st.lds) - n:] if 0 < n < len(st.lds) else ([] if n == 0 else st.lds)
            out.append(ins)
            continue
        touched = ins.r | ins.w
        need = -1
        for i, d in enumerate(st.lds):
            if d & touched:
                need = i
        if need >= 0:
            if verify:
                raise AssertionError("missing lgkm wait before: %s" % ins.t)
            pos = len(out)
            j = len(out) - 1
            nl = 0
            while j >= 0 and out[j].k not in ("mfma", "label", "br", "bar", "wait"):
                if out[j].k == "lds":
                    nl += 1
                j -= 1
            n_after = len(st.lds) - 1 - need
            if j >= 0 and out[j].k == "mfma" and nl <= n_after:
                pos = j + 1
                n_at = n_after - nl
            else:
                n_at = n_after
            out.insert(pos, I("s_waitcnt lgkmcnt(%d)" % min(n_at, 15), "wait"))
            st.lds = st.lds[need + 1:]
        needv = -1
        for i, (tag, d) in enumerate(st.vm):
            if d & touched:
                needv = i
        if needv >= 0:
            raise AssertionError("missing vm wait before: %s" % ins.t)
        if ins.k == "lds":
            st.lds.append(set(ins.w))
        if ins.k in ("dma", "vld", "vst"):
            st.vm.append((ins.tag, set(ins.w)))
        out.append(ins)
    return out


def states_of(ins):
    if ins.k == "label":
        return 0
    m = re.match(r"s_nop (\d+)", ins.t)
    if m:
        return int(m.group(1)) + 1
    return 1


def fix_hazards(code, prev=(), report=None):
    hist = list(prev)[-24:]
    out = []
    nins = 0
    VALU = ("valu", "trans", "perm")
    for ins in code:
        need = 0
        dist = 0
        for p in reversed(hist):
            req = 0
            if p.k == "mfma":
                if ins.k == "mfma":
                    ab = ins.r - ins.srcc
                    if p.w & ab:
                        req = 8
                    elif (p.w & ins.srcc) and p.w != ins.srcc:
                        req = 6
                elif ins.k in VALU + ("lds", "vld", "vst", "dma"):
                    if p.w & (ins.r | ins.w):
                        req = 8
                    elif ins.k in VALU and (p.srcc & ins.w):
                        req = 3
            elif p.k in VALU:
                if ins.k == "mfma" and (p.w & ins.r):
                    req = 2
                if ins.k == "perm" and (p.w & ins.r):
                    req = 2
                if p.k == "trans" and ins.k in ("valu", "perm") and (p.w & ins.r):
                    req = max(req, 1)
                sg = {r for r in p.w if r[0] == "s" or r == "vcc"}
                if sg:
                    if ins.k in ("vld", "vst", "dma") and (sg & ins.r):
                        req = max(req, 5)
                    if ins.k in VALU and (sg & ins.r):
                        req = max(req, 2)
                if ins.t.startswith(("v_readfirstlane", "v_readlane")) and (p.w & ins.r):
                    req = max(req, 1)
            elif p.k == "vst":
                if ins.k in VALU + ("lds", "vld") and (p.r & {r for r in ins.w if r[0] in "va"}):
                    req = 2
            elif p.k == "salu":
                if "m0" in p.w and ins.k == "dma":
                    req = 1
            if req - dist > need:
                need = req - dist
            dist += states_of(p)
            if dist >= 20:
                break
        if need > 0:
            nop = I("s_nop %d" % (need - 1), "nop")
            out.append(nop)
            hist.append(nop)
            nins += need
            if report is not None:
                report.append((need, ins.t))
        out.append(ins)
        hist.append(ins)
        if len(hist) > 48:
            hist = hist[-24:]
    return out, nins
```

```python
import sys
import struct
from asmlib import *

OPT = dict(lk=4, vlead=5, stamps=0, stflag="", qflag="", touch=1, late4=2, late3=1, look=1.5, pkmul=1,
           slow=1, thr=2.0 ** 30, kvflag="")
for a in sys.argv[1:]:
    k, v = a.split("=")
    OPT[k] = type(OPT[k])(v) if not isinstance(OPT[k], str) else v

KN = "standalone__mha_softmax__near_ridge_kernel"
PIECE, SLOT = 1056, 16896
KBASE, VBASE = 0, 4 * SLOT
LDS_BYTES = 8 * SLOT
Q_BYTES = 16 * 16 * 848 * 256 * 2
KV_BYTES = 16 * 16 * 512 * 256 * 2
OOB = 0x70000000

X, Y, Z = 192, 208, 224
vK, vV, vD, vQ, vO, vT = 240, 241, 242, 243, 244, 245
MC, L = 246, 250
vDUM, vTMP = 254, 255
FR = 192
sQ, sK, sV, sO = 8, 12, 16, 20
sGEN, sWAVE, sW, sC, sTHR = 24, 25, 26, 27, 28
sKOFF, sVOFF, sKEND, sKVN = 29, 30, 31, 32
sOT, sQN = 33, 37
sCNT, sFIRST, sNCUR, sNNEXT, sTOUCH = 41, 42, 43, 44, 45
sFAIL = 46
sHEAD0, sMEM = 48, 49
sT = 50
sWS = 60
sST = 64
sKVCUR = 70


def srd(s):
    return "s[%d:%d]" % (s, s + 3)


def f32bits(x):
    return struct.unpack("<I", struct.pack("<f", x))[0]


def Oreg(t, dt):
    return ("v", t * 64 + dt * 4, 4) if t < 3 else ("a", 128 + dt * 4, 4)


def Qreg(t, s):
    return ("a", t * 32 + s * 4, 4)


def frag(f):
    return ("a", FR + 4 * (f & 15), 4)


def SA(i):
    return X if i % 2 == 0 else Z


def kread(i, f):
    return op("ds_read_b128 %s, v%d offset:%d" % (reg_of(frag(f)), vK, KBASE + (i % 4) * SLOT + (f >> 3) * 512 + (f & 7) * 64))


def vread(i, dt, e):
    return op("ds_read_b64_tr_b16 %s, v%d offset:%d" % (rng("a", FR + 4 * dt + 2 * e, 2), vV, (i % 4) * SLOT + e * 512 + dt * 32))


def dma_pair(isv, slot, p, tag):
    base = (VBASE if isv else KBASE) + slot * SLOT + 32 * p
    m = op("s_add_u32 m0, s%d, %d" % (sW, base))
    d = op("buffer_load_dwordx4 v%d, %s, s%d offen offset:%d%s lds" % (
        vD, srd(sV if isv else sK), sVOFF if isv else sKOFF, p * 1024, OPT["kvflag"] and " " + OPT["kvflag"]), tag=tag)
    return m, d


def adv(s):
    return [op("s_add_u32 s%d, s%d, 16384" % (s, s)), op("s_cmp_eq_u32 s%d, s%d" % (s, sKEND)),
            op("s_cselect_b32 s%d, s%d, s%d" % (s, sKVN, s))]


def qload(t, s, tag="qn"):
    return op("buffer_load_dwordx4 %s, v%d, %s, s%d offen offset:%d%s" % (
        reg_of(Qreg(t, s)), vQ, srd(sQ), sQN + t, s * 64, OPT["qflag"] and " " + OPT["qflag"]), tag=tag)


def sm_group(i, kt, t):
    src = (SA(i) if kt == 0 else Y) + 4 * t
    dst = SA(i) + 4 * t + 2 * kt
    f = [op("v_fma_f32 v%d, v%d, s%d, -v%d" % (src + r, src + r, sC, MC + t)) for r in range(4)]
    e = [op("v_exp_f32 v%d, v%d" % (src + r, src + r)) for r in range(4)]
    a = [op("v_add_f32 v%d, v%d, v%d" % (L + t, L + t, src + r)) for r in range(4)]
    c = [op("v_cvt_pk_bf16_f32 v%d, v%d, v%d" % (dst + h, src + 2 * h, src + 2 * h + 1)) for h in range(2)]
    return [f[0], f[1], e[0], f[2], f[3], e[1], a[0], e[2], a[1], c[0], e[3], a[2], a[3], c[1]]


def xlane(reg, tmp, opname):
    return [op("v_mov_b32 v%d, v%d" % (tmp, reg)),
            op("v_permlane32_swap_b32 v%d, v%d" % (reg, tmp)),
            op("%s v%d, v%d, v%d" % (opname, reg, reg, tmp)),
            op("v_mov_b32 v%d, v%d" % (tmp, reg)),
            op("v_permlane16_swap_b32 v%d, v%d" % (reg, tmp)),
            op("%s v%d, v%d, v%d" % (opname, reg, reg, tmp))]


def interleave(lists):
    out = []
    for k in range(max(len(x) for x in lists)):
        for x in lists:
            if k < len(x):
                out.append(x[k])
    return out


_uid = [0]


def cond_wait(tag):
    _uid[0] += 1
    lab = "L_cw%d" % _uid[0]
    m = I("macro", "raw", r={"s%d" % sFIRST}, w={"scc"})
    m.tag = [op("s_cmp_eq_u32 s%d, 0" % sFIRST), I("s_cbranch_scc1 " + lab, "br"), wait_vm(tag), label(lab)]
    return m


def expand(code):
    out = []
    for ins in code:
        if ins.k == "raw" and isinstance(ins.tag, list):
            out += ins.tag
        else:
            out.append(ins)
    return out


def qk_mfmas(n, i):
    ms = []
    for kt in range(2):
        for s in range(8):
            for t in range(n):
                d = ("v", (SA(i) if kt == 0 else Y) + 4 * t, 4)
                ms.append(mfma(d, frag(kt * 8 + s), Qreg(t, s), d if s else None))
    return ms


def pv_mfmas(n, i, init):
    ms = []
    for dt in range(16):
        for t in range(n):
            ms.append(mfma(Oreg(t, dt), frag(16 + dt), ("v", SA(i) + 4 * t, 4), None if init else Oreg(t, dt)))
    return ms


def barrier_items(gb, vmtag, cond):
    its = []
    if cond:
        its.append(Item(cond_wait(vmtag), fixed=gb - 2))
        w = I("s_waitcnt lgkmcnt(0)", "wait")
    else:
        w = wait_vm(vmtag)
        w.lg = 0
    its.append(Item(w, fixed=gb - 1))
    its.append(Item(I("s_barrier", "bar"), fixed=gb))
    return its


def dma_items(n, i, positions):
    its = []
    tag = "g%d" % (i % 4)
    k = 0
    for isv in (0, 1):
        slot = (i + 2) % 4 if isv else (i + 3) % 4
        for p in range(4):
            m, d = dma_pair(isv, slot, p, tag)
            g = positions[k]
            k += 1
            its.append(Item(m, fixed=g - 1))
            its.append(Item(d, fixed=g))
        for a in adv(sVOFF if isv else sKOFF):
            its.append(Item(a, lo=g + 1, tgt=g + 1))
    return its


def dma_pos(n, lo, hi, cnt=8):
    cand = [p for p in range(lo, hi) if p % n == 2]
    return [cand[int(k * len(cand) / cnt)] for k in range(cnt)]


STATS = []


def run_sched(name, ms, items, n, reserved):
    code, tail, over, used = schedule(ms, items, reserved_shadow=reserved, look=OPT["look"])
    STATS.append((name, len(ms), over, len(tail), sum(used)))
    return expand(code + tail)


def seg_pro(n):
    H = 8 * n
    LK = OPT["lk"]
    ms = qk_mfmas(n, 0)
    G = len(ms)
    gb = G - n * LK
    if gb % n == n - 1:
        gb -= 1
    items = []
    for t in range(n):
        items.append(Item(op("v_mov_b32 v%d, 0" % (L + t)), lo=0))
    if n == 3:
        pos = dma_pos(n, 1, H, 8)
        for s in range(8):
            items.append(Item(qload(3, s), fixed=pos[s]))
    for f in range(LK, 16):
        tg = min(n * (f - LK), gb - 8 - (15 - f))
        items.append(Item(kread(0, f), lo=0, tgt=max(tg, 0), hi=min(n * f - 3, gb - 3)))
    items += barrier_items(gb, "g2", True)
    for f in range(LK):
        items.append(Item(kread(1, f), lo=gb, tgt=gb + f, hi=G - 1))
    mx = []
    for t in range(n):
        s = X + 4 * t
        m = MC + t
        mx.append([op("v_max3_f32 v%d, v%d, v%d, v%d" % (m, s, s + 1, s + 2)),
                   op("v_max_f32 v%d, v%d, v%d" % (m, m, s + 3))] + xlane(m, Z + t, "v_max_f32") +
                  [op("v_mul_f32 v%d, s%d, v%d" % (m, sC, m))])
    vs = [Item(x, lo=H + 3) for x in interleave(mx)]
    ng = 2 if n == 4 else 1
    for t in range(ng):
        vs += [Item(x, lo=H + 3) for x in sm_group(0, 0, t)]
    for it in vs:
        it.tgt = H + 3
        it.hi = G - 1
    items += vs
    reserved = {n * f - 1 for f in range(1, 17)}
    late = [(0, 0, t) for t in range(ng, n)] + [(0, 1, t) for t in range(n)]
    return run_sched("pro%d" % n, ms, items, n, reserved), late


def seg_iter(n, i, late, last=False, loop_end=None, touch=False):
    H = 8 * n
    LK, VL = OPT["lk"], OPT["vlead"]
    ms = qk_mfmas(n, i) + pv_mfmas(n, i - 1, init=(i == 1))
    G = len(ms)
    gb = G - n * LK
    if gb % n == n - 1:
        gb -= 1
    items = []
    if touch and OPT["touch"]:
        items.append(Item(op("buffer_load_dword v%d, v%d, %s, s%d offen" % (vDUM, vT, srd(sQ), sTOUCH), tag="touch"), fixed=0))
        items.append(Item(op("s_add_u32 s%d, s%d, 8192" % (sTOUCH, sTOUCH)), fixed=0 + n))
        items[-1].fixed = None
        items[-1].lo = items[-1].tgt = 0
        items[-1].deps.append((items[-2], 1))
    items += dma_items(n, i, dma_pos(n, n + 1, (3 * H if not last else 2 * H), 8))
    for f in range(LK, 16):
        items.append(Item(kread(i, f), lo=0, tgt=n * (f - LK), hi=n * f - 3))
    for dt in range(16):
        f = 16 + dt
        tg = min(n * (f - VL), gb - 8 - 2 * (15 - dt))
        for e in range(2):
            items.append(Item(vread(i - 1, dt, e), lo=n * (f - 15), tgt=tg + e * n / 2.0, hi=min(n * f - 3, gb - 3)))
    items += barrier_items(gb, "g%d" % ((i - 2) % 4), i <= 2)
    if not last:
        for f in range(LK):
            items.append(Item(kread(i + 1, f), lo=gb, tgt=gb + f, hi=G - 1))
    else:
        for dt in range(LK):
            for e in range(2):
                items.append(Item(vread(i, dt, e), lo=gb, tgt=gb + dt, hi=G - 1))
    lv = []
    for (ii, kt, t) in late:
        lv += [Item(x, lo=0, hi=H - 1) for x in sm_group(ii, kt, t)]
    if lv:
        spread(lv, 0, H - 2)
    items += lv
    nl = 0 if last else (OPT["late4"] if n == 4 else OPT["late3"])
    own = [(i, 0, t) for t in range(n)] + [(i, 1, t) for t in range(n - nl)]
    ov = []
    for (ii, kt, t) in own:
        lo = (H if kt == 0 else 2 * H) - n + t + 4
        ov += [Item(x, lo=lo, hi=G - 1) for x in sm_group(ii, kt, t)]
    spread(ov, H, G - 2)
    items += ov
    if last:
        ql = [Item(qload(t, s), lo=H + n * s + n) for t in range(1) for s in range(8)]
        spread(ql, 2 * H, G - 2)
        items += ql
    if loop_end:
        items.append(Item(op("s_sub_u32 s%d, s%d, 1" % (sCNT, sCNT)), fixed=G - 3))
        items.append(Item(op("s_cmp_lg_u32 s%d, 0" % sCNT), fixed=G - 2))
    reserved = {n * f - 1 for f in range(1, 33)}
    code = run_sched("it%d_%d" % (n, i), ms, items, n, reserved)
    if loop_end:
        code.append(I("s_cbranch_scc1 " + loop_end, "br"))
    return code, [(i, 1, t) for t in range(n - nl, n)]


def epi_group(n, u, t, hidden):
    out = []
    if t < 3:
        b = t * 64 + 8 * u
    else:
        b = (Y if u % 2 == 0 else X) + 0
        b += 0
        for r in range(8):
            out.append(op("v_accvgpr_read_b32 v%d, a%d" % (b + r, 128 + 8 * u + r)))
    if hidden or not OPT["pkmul"]:
        for r in range(8):
            out.append(op("v_mul_f32 v%d, v%d, v%d" % (b + r, b + r, L + t)))
    else:
        lp = L + t - (t % 2)
        sel = t % 2
        for r in range(0, 8, 2):
            out.append(op("v_pk_mul_f32 v[%d:%d], v[%d:%d], v[%d:%d] op_sel:[0,%d] op_sel_hi:[1,%d]" % (
                b + r, b + r + 1, b + r, b + r + 1, lp, lp + 1, sel, sel)))
    for h in range(4):
        out.append(op("v_cvt_pk_bf16_f32 v%d, v%d, v%d" % (b + h, b + 2 * h, b + 2 * h + 1)))
    out.append(op("v_permlane16_swap_b32 v%d, v%d" % (b, b + 2)))
    out.append(op("v_permlane16_swap_b32 v%d, v%d" % (b + 1, b + 3)))
    out.append(op("buffer_store_dwordx4 v[%d:%d], v%d, %s, s%d offen offset:%d%s" % (
        b, b + 3, vO, srd(sO), sOT + t, 64 * u, OPT["stflag"] and " " + OPT["stflag"]), tag="st"))
    return out


def seg_last(n):
    LK, VL = OPT["lk"], OPT["vlead"]
    ms = pv_mfmas(n, 15, False)
    G = len(ms)
    items = []
    items += dma_items(n, 16, dma_pos(n, 1, G // 2, 8))
    for dt in range(LK, 16):
        for e in range(2):
            items.append(Item(vread(15, dt, e), lo=0, tgt=n * (dt - LK) + e * n / 2.0, hi=n * dt - 3))
    fin = []
    for t in range(n):
        fin.append(xlane(L + t, X + t, "v_add_f32") +
                   [op("v_cmp_nge_f32 vcc, s%d, v%d" % (sTHR, L + t)),
                    op("s_or_b64 s[%d:%d], s[%d:%d], vcc" % (sFAIL, sFAIL + 1, sFAIL, sFAIL + 1)),
                    op("v_rcp_f32 v%d, v%d" % (L + t, L + t))])
    fl = interleave([x[:6] for x in fin])
    for x in fin:
        fl += x[6:]
    items += [Item(x, lo=0, tgt=0) for x in fl]
    ql = [Item(qload(t, s), lo=G // 2) for t in range(1, 3) for s in range(8)]
    spread(ql, G // 2, G)
    items += ql
    reserved = {n * f - 1 for f in range(1, 17)}
    code = run_sched("last%d" % n, ms, items, n, reserved)
    groups = [epi_group(n, u, t, False) for u in range(8) for t in range(n)]
    k = 0
    while k < len(groups):
        code += interleave(groups[k:k + n])
        k += n
    code.append(wait_vm("qn"))
    return code


def stamp(idx):
    if not OPT["stamps"]:
        return []
    t = []
    t.append(raw("s_memtime s[%d:%d]" % (sST, sST + 1)))
    t.append(raw("s_memrealtime s[%d:%d]" % (sST + 2, sST + 3)))
    t.append(raw("s_waitcnt lgkmcnt(0)"))
    for r in range(4):
        t.append(raw("v_mov_b32 v%d, s%d" % (Z + r, sST + r)))
    t.append(raw("v_mov_b32 v%d, s%d" % (vTMP, sST + 4)))
    t.append(raw("s_mov_b64 exec, 1"))
    t.append(raw("buffer_store_dwordx4 v[%d:%d], v%d, %s, 0 offen" % (Z, Z + 3, vTMP, srd(sWS))))
    t.append(raw("s_mov_b64 exec, -1"))
    t.append(raw("s_add_u32 s%d, s%d, 16" % (sST + 4, sST + 4)))
    t.append(raw("s_nop 1"))
    return t


def next_params():
    A = []
    a = lambda s: A.append(raw(s))
    t = sT
    a("s_lshl_b32 s%d, s%d, 6" % (t, sGEN))
    a("s_add_u32 s%d, s%d, s%d" % (t, t, sHEAD0))
    a("s_lshl_b32 s%d, s%d, 18" % (sKVN, t))
    a("s_mul_i32 s%d, s%d, 848" % (t, t))
    a("s_add_u32 s%d, s%d, s%d" % (t + 1, sMEM, sGEN))
    a("s_and_b32 s%d, s%d, 3" % (t + 1, t + 1))
    a("s_mul_i32 s%d, s%d, 48" % (t + 2, sWAVE))
    a("s_mov_b32 s%d, 3" % sNNEXT)
    a("s_add_u32 s%d, s%d, 656" % (t + 3, t + 2))
    a("s_add_u32 s%d, s%d, 256" % (t + 4, t + 2))
    a("s_cmp_eq_u32 s%d, 1" % (t + 1))
    a("s_cselect_b32 s%d, s%d, s%d" % (t + 3, t + 4, t + 3))
    a("s_add_u32 s%d, s%d, 464" % (t + 4, t + 2))
    a("s_cmp_eq_u32 s%d, 0" % sWAVE)
    a("s_cselect_b32 s%d, 448, s%d" % (t + 4, t + 4))
    a("s_cselect_b32 s%d, 4, 3" % (t + 5))
    a("s_cmp_eq_u32 s%d, 2" % (t + 1))
    a("s_cselect_b32 s%d, s%d, s%d" % (t + 3, t + 4, t + 3))
    a("s_cselect_b32 s%d, s%d, s%d" % (sNNEXT, t + 5, sNNEXT))
    a("s_lshl_b32 s%d, s%d, 6" % (t + 4, sWAVE))
    a("s_cmp_eq_u32 s%d, 0" % (t + 1))
    a("s_cselect_b32 s%d, s%d, s%d" % (t + 3, t + 4, t + 3))
    a("s_cselect_b32 s%d, 4, s%d" % (sNNEXT, sNNEXT))
    a("s_add_u32 s%d, s%d, s%d" % (t, t, t + 3))
    a("s_lshl_b32 s%d, s%d, 9" % (sQN, t))
    a("s_cmp_ge_u32 s%d, 4" % sGEN)
    a("s_cselect_b32 s%d, 0x%x, s%d" % (sQN, OOB, sQN))
    a("s_cselect_b32 s%d, 0x%x, s%d" % (sKVN, OOB, sKVN))
    a("s_add_u32 s%d, s%d, 8192" % (sQN + 1, sQN))
    a("s_add_u32 s%d, s%d, 16384" % (sQN + 2, sQN))
    a("s_add_u32 s%d, s%d, 24576" % (sQN + 3, sQN))
    a("s_cmp_eq_u32 s%d, 4" % sNNEXT)
    a("s_cselect_b32 s%d, s%d, 0x%x" % (sQN + 3, sQN + 3, OOB))
    return A


def slow_path():
    A = []
    a = lambda s: A.append(s)
    QS, KF, VF, OA, S0, P0 = 0, 32, 64, 96, 160, 168
    m, l, tmp, vkq, vv, vst = 176, 177, 178, 179, 180, 181
    t = sT
    a("L_slow:")
    a("s_waitcnt vmcnt(0) lgkmcnt(0)")
    a("v_mbcnt_lo_u32_b32 v%d, -1, 0" % tmp)
    a("v_mbcnt_hi_u32_b32 v%d, -1, v%d" % (tmp, tmp))
    a("v_lshrrev_b32 v%d, 4, v%d" % (vv, tmp))
    a("v_and_b32 v%d, 15, v%d" % (tmp, tmp))
    a("v_lshlrev_b32 v%d, 9, v%d" % (vst, tmp))
    a("v_lshl_add_u32 v%d, v%d, 3, v%d" % (vst, vv, vst))
    a("v_lshlrev_b32 v%d, 11, v%d" % (vv, vv))
    a("v_lshl_add_u32 v%d, v%d, 1, v%d" % (vv, tmp, vv))
    a("s_mov_b32 s%d, 0" % t)
    a("s_mov_b32 s%d, s%d" % (t + 1, sOT))
    a("L_slow_tile:")
    for s in range(8):
        a("buffer_load_dwordx4 v[%d:%d], v%d, %s, s%d offen offset:%d" % (QS + 4 * s, QS + 4 * s + 3, vQ, srd(sQ), t + 1, 64 * s))
    a("v_mov_b32 v%d, 0xff800000" % m)
    a("s_mov_b32 s%d, s%d" % (t + 2, sKVCUR))
    a("s_mov_b32 s%d, 32" % (t + 3))

    def qk16(dst):
        for s in range(8):
            a("buffer_load_dwordx4 v[%d:%d], v%d, %s, s%d offen offset:%d" % (KF + 4 * s, KF + 4 * s + 3, vQ, srd(sK), t + 2, 64 * s))
        a("s_waitcnt vmcnt(0)")
        for s in range(8):
            a("v_mfma_f32_16x16x32_bf16 v[%d:%d], v[%d:%d], v[%d:%d], %s" % (
                dst, dst + 3, KF + 4 * s, KF + 4 * s + 3, QS + 4 * s, QS + 4 * s + 3,
                "0" if s == 0 else "v[%d:%d]" % (dst, dst + 3)))
        a("s_nop 7")
        a("s_nop 1")
        a("s_add_u32 s%d, s%d, 8192" % (t + 2, t + 2))

    a("L_slow_max:")
    qk16(S0)
    a("v_max3_f32 v%d, v%d, v%d, v%d" % (m, m, S0, S0 + 1))
    a("v_max3_f32 v%d, v%d, v%d, v%d" % (m, m, S0 + 2, S0 + 3))
    a("s_sub_u32 s%d, s%d, 1" % (t + 3, t + 3))
    a("s_cmp_lg_u32 s%d, 0" % (t + 3))
    a("s_cbranch_scc1 L_slow_max")
    for x in xlane(m, tmp, "v_max_f32"):
        a("s_nop 1")
        a(x.t)
    a("v_mul_f32 v%d, s%d, v%d" % (m, sC, m))
    a("v_mov_b32 v%d, 0" % l)
    for r in range(64):
        a("v_mov_b32 v%d, 0" % (OA + r))
    a("s_mov_b32 s%d, s%d" % (t + 2, sKVCUR))
    a("s_mov_b32 s%d, 16" % (t + 3))
    a("L_slow_pv:")
    a("s_mov_b32 s%d, s%d" % (t + 4, t + 2))
    a("s_add_u32 s%d, s%d, 8192" % (t + 5, t + 2))
    qk16(S0)
    qk16(S0 + 4)
    for r in range(8):
        a("v_fma_f32 v%d, v%d, s%d, -v%d" % (S0 + r, S0 + r, sC, m))
    for r in range(8):
        a("v_exp_f32 v%d, v%d" % (S0 + r, S0 + r))
    a("s_nop 0")
    for r in range(8):
        a("v_add_f32 v%d, v%d, v%d" % (l, l, S0 + r))
    for h in range(4):
        a("v_cvt_pk_bf16_f32 v%d, v%d, v%d" % (P0 + h, S0 + 2 * h, S0 + 2 * h + 1))
    for dt in range(16):
        for j in range(8):
            a("buffer_load_ushort v%d, v%d, %s, s%d offen offset:%d" % (VF + j, vv, srd(sV), t + 4 + (j >> 2), (j & 3) * 512 + dt * 32))
        a("s_waitcnt vmcnt(0)")
        for h in range(4):
            a("v_lshl_or_b32 v%d, v%d, 16, v%d" % (VF + 8 + h, VF + 2 * h + 1, VF + 2 * h))
        a("s_nop 1")
        a("v_mfma_f32_16x16x32_bf16 v[%d:%d], v[%d:%d], v[%d:%d], v[%d:%d]" % (
            OA + 4 * dt, OA + 4 * dt + 3, VF + 8, VF + 11, P0, P0 + 3, OA + 4 * dt, OA + 4 * dt + 3))
    a("s_sub_u32 s%d, s%d, 1" % (t + 3, t + 3))
    a("s_cmp_lg_u32 s%d, 0" % (t + 3))
    a("s_cbranch_scc1 L_slow_pv")
    for x in xlane(l, tmp, "v_add_f32"):
        a("s_nop 1")
        a(x.t)
    a("v_rcp_f32 v%d, v%d" % (l, l))
    a("s_nop 7")
    for dt in range(16):
        b = OA + 4 * dt
        for r in range(4):
            a("v_mul_f32 v%d, v%d, v%d" % (b + r, b + r, l))
        a("v_cvt_pk_bf16_f32 v%d, v%d, v%d" % (b, b, b + 1))
        a("v_cvt_pk_bf16_f32 v%d, v%d, v%d" % (b + 1, b + 2, b + 3))
        a("buffer_store_dwordx2 v[%d:%d], v%d, %s, s%d offen offset:%d" % (b, b + 1, vst, srd(sO), t + 1, 32 * dt))
    a("s_waitcnt vmcnt(0)")
    a("s_add_u32 s%d, s%d, 1" % (t, t))
    a("s_add_u32 s%d, s%d, 8192" % (t + 1, t + 1))
    a("s_cmp_lt_u32 s%d, s%d" % (t, sNCUR))
    a("s_cbranch_scc1 L_slow_tile")
    a("s_branch L_next")
    return A


def main():
    T = []
    a = T.append
    hdr = open("standalone__mha_softmax__near_ridge.s.ref").read().split("\n")
    for line in hdr:
        if line.startswith("; @launch"):
            break
        a(line)
    a("; @launch grid=(256,1,1) block=(256,1,1) lds=%d" % LDS_BYTES)
    a('.amdgcn_target "amdgcn-amd-amdhsa--gfx950"')
    a(".text\n.globl %s\n.p2align 8\n.type %s,@function\n%s:" % (KN, KN, KN))
    a("s_cmp_ge_u32 s2, 256\ns_cbranch_scc1 L_end")
    a("s_load_dwordx4 s[52:55], s[0:1], 0\ns_load_dwordx4 s[56:59], s[0:1], 16")
    if OPT["stamps"]:
        a("s_load_dwordx2 s[%d:%d], s[0:1], 40" % (sWS, sWS + 1))
    a("v_lshrrev_b32 v1, 6, v0")
    a("v_and_b32 v2, 63, v0")
    a("v_readfirstlane_b32 s%d, v1" % sWAVE)
    a("v_and_b32 v3, 15, v2")
    a("v_lshrrev_b32 v4, 4, v2")
    a("v_mul_u32_u24 v%d, %d, v3" % (vK, PIECE))
    a("v_lshl_add_u32 v%d, v4, 4, v%d" % (vK, vK))
    a("v_lshrrev_b32 v5, 2, v3")
    a("v_lshl_add_u32 v5, v4, 2, v5")
    a("v_mul_u32_u24 v%d, %d, v5" % (vV, PIECE))
    a("v_and_b32 v5, 3, v3")
    a("v_lshl_add_u32 v%d, v5, 3, v%d" % (vV, vV))
    a("v_add_u32 v%d, %d, v%d" % (vV, VBASE, vV))
    a("v_lshlrev_b32 v%d, 12, v1" % vD)
    a("v_lshl_add_u32 v%d, v2, 4, v%d" % (vD, vD))
    a("v_lshlrev_b32 v%d, 9, v3" % vQ)
    a("v_and_b32 v5, 1, v4")
    a("v_lshl_add_u32 v%d, v5, 5, v%d" % (vO, vQ))
    a("v_lshrrev_b32 v5, 1, v4")
    a("v_lshl_add_u32 v%d, v5, 4, v%d" % (vO, vO))
    a("v_lshl_add_u32 v%d, v4, 4, v%d" % (vQ, vQ))
    a("v_lshlrev_b32 v%d, 7, v2" % vT)
    a("s_and_b32 s%d, s2, 7" % sHEAD0)
    a("s_lshr_b32 s%d, s2, 3" % sMEM)
    a("s_lshr_b32 s3, s%d, 2" % sMEM)
    a("s_lshl_b32 s3, s3, 3")
    a("s_add_u32 s%d, s%d, s3" % (sHEAD0, sHEAD0))
    a("s_and_b32 s%d, s%d, 3" % (sMEM, sMEM))
    a("s_mul_i32 s%d, s%d, %d" % (sW, sWAVE, 4 * PIECE))
    a("s_mov_b32 s%d, 0x%08x" % (sC, f32bits(1.4426950408889634 / 16.0)))
    a("s_mov_b32 s%d, 0x%08x" % (sTHR, f32bits(OPT["thr"])))
    a("s_mov_b32 s%d, 0" % sGEN)
    a("s_mov_b32 s%d, 1" % sFIRST)
    a("s_waitcnt lgkmcnt(0)")
    for s, src, nb in ((sQ, 52, Q_BYTES), (sK, 54, KV_BYTES), (sV, 56, KV_BYTES), (sO, 58, Q_BYTES)):
        a("s_mov_b32 s%d, s%d\ns_mov_b32 s%d, s%d\ns_mov_b32 s%d, 0x%x\ns_mov_b32 s%d, 0x20000" % (
            s, src, s + 1, src + 1, s + 2, nb, s + 3))
    if OPT["stamps"]:
        a("s_mov_b32 s%d, 0x1000000\ns_mov_b32 s%d, 0x20000" % (sWS + 2, sWS + 3))
        a("s_mul_i32 s%d, s2, %d" % (sST + 4, 8 * OPT["stamps"]))
        a("s_lshl_b32 s3, s%d, 20\ns_add_u32 s%d, s%d, s3" % (sWAVE, sST + 4, sST + 4))
    pro = []
    pro += stamp(0)
    pro += next_params()
    pro.append(raw("s_mov_b32 s%d, s%d" % (sKOFF, sKVN)))
    pro.append(raw("s_mov_b32 s%d, s%d" % (sVOFF, sKVN)))

    def grp(isv, slot, tag):
        o = []
        for p in range(4):
            m, d = dma_pair(isv, slot, p, tag)
            o += [m, d]
        s = sVOFF if isv else sKOFF
        o.append(op("s_add_u32 s%d, s%d, 16384" % (s, s)))
        return o
    pro += grp(0, 0, "k0")
    for t in range(4):
        for s in range(8):
            pro.append(qload(t, s))
    pro += grp(0, 1, "g2") + grp(1, 0, "g2") + grp(0, 2, "g3") + grp(1, 1, "g3") + grp(0, 3, "g0") + grp(1, 2, "g0")
    pro.append(wait_vm("qn"))
    pro.append(I("s_barrier", "bar"))
    st = WaitState()
    pro = insert_waits(pro, st)
    pro, _ = fix_hazards(pro)
    T += [x.t for x in pro]
    top = [label("L_blk")]
    top += stamp(1)
    for t in range(4):
        top.append(raw("s_mov_b32 s%d, s%d" % (sOT + t, sQN + t)))
    top.append(raw("s_mov_b32 s%d, s%d" % (sNCUR, sNNEXT)))
    top.append(raw("s_mov_b32 s%d, s%d" % (sKVCUR, sKVN)))
    top.append(raw("s_add_u32 s%d, s%d, 262144" % (sKEND, sKVN)))
    for f in range(OPT["lk"]):
        top.append(kread(0, f))
    top.append(raw("s_add_u32 s%d, s%d, 1" % (sGEN, sGEN)))
    top += next_params()
    top.append(raw("s_mov_b32 s%d, s%d" % (sTOUCH, sQN)))
    top.append(raw("s_mov_b64 s[%d:%d], 0" % (sFAIL, sFAIL + 1)))
    top.append(raw("s_mov_b32 s%d, 3" % sCNT))
    top.append(raw("s_cmp_eq_u32 s%d, 4" % sNCUR))
    top.append(I("s_cbranch_scc0 L_blk3", "br"))
    top = insert_waits(top, st)
    T += [x.t for x in top]
    tot_nops = 0
    for n in (4, 3):
        s2 = st.copy()
        rep = []
        pre, late = seg_pro(n)
        c1, late = seg_iter(n, 1, late)
        c2, late = seg_iter(n, 2, late)
        head = [label("L_blk%d" % n)] + pre + c1 + c2
        body = []
        for i in range(3, 7):
            c, late = seg_iter(n, i, late, loop_end=("L_loop%d" % n if i == 6 else None), touch=(i == 3))
            body += c
        late = [(14, kt, t) for (_, kt, t) in late]
        c15, late = seg_iter(n, 15, late, last=True)
        tail = c15 + seg_last(n)
        head = insert_waits(head, s2)
        entry = s2.copy()
        body = insert_waits(body, s2)
        chk = s2.copy()
        insert_waits(body, chk, verify=True)
        tail = insert_waits(tail, s2)
        head, k1 = fix_hazards(head, report=rep)
        body, k2 = fix_hazards(body, prev=head, report=rep)
        _, k2b = fix_hazards(body[:40], prev=body)
        assert k2b == 0, "back-edge hazard"
        tail, k3 = fix_hazards(tail, prev=body, report=rep)
        sys.stderr.write("n=%d nops: head %d body %d tail %d\n" % (n, k1, k2, k3))
        for r in rep[:12]:
            sys.stderr.write("   nop %d before %s\n" % r)
        T += [x.t for x in head]
        a(".p2align 6")
        a("L_loop%d:" % n)
        T += [x.t for x in body]
        T += [x.t for x in tail]
        if OPT["slow"]:
            a("s_cmp_lg_u64 s[%d:%d], 0" % (sFAIL, sFAIL + 1))
            a("s_cbranch_scc1 L_slow")
        if n == 4:
            a("s_branch L_next")
    a("L_next:")
    a("s_mov_b32 s%d, 0" % sFIRST)
    a("s_cmp_lt_u32 s%d, 4" % sGEN)
    a("s_cbranch_scc1 L_blk")
    T += [x.t for x in stamp(9)]
    a("L_end:\ns_endpgm")
    if OPT["slow"]:
        T += slow_path()
    a('.section .rodata,"a"\n.p2align 6\n.amdhsa_kernel %s' % KN)
    a("  .amdhsa_next_free_vgpr 512\n  .amdhsa_next_free_sgpr 80\n  .amdhsa_accum_offset 256")
    a("  .amdhsa_group_segment_fixed_size 0\n  .amdhsa_kernarg_size 48\n  .amdhsa_user_sgpr_count 2")
    a("  .amdhsa_user_sgpr_kernarg_segment_ptr 1\n  .amdhsa_system_sgpr_workgroup_id_x 1\n.end_amdhsa_kernel")
    print("\n".join(T))
    for s in STATS:
        sys.stderr.write("%-8s mfma %3d overflow %3d tail %3d used %3d\n" % s)


main()
```
